```python
import torch

def _softmax(x, axis=-1):
    return torch.softmax(x, dim=axis)
def _gelu(x):
    return torch.nn.functional.gelu(x, approximate="tanh")
def _silu(x):
    return torch.nn.functional.silu(x)
def _sigmoid(x):
    return torch.sigmoid(x)
def _layernorm(x, axis=-1, eps=1e-5):
    m = x.mean(dim=axis, keepdim=True)
    v = x.var(dim=axis, keepdim=True, unbiased=False)
    return (x - m) / torch.sqrt(v + eps)
def _scatter_add(tgt, idx, src, axis=0):
    return tgt.clone().index_add_(axis, idx, src)
def _segment_sum(src, seg, n):
    out = torch.zeros((n,) + src.shape[1:], dtype=src.dtype)
    return out.index_add_(0, seg, src)
def _pad(x, pw):
    flat = tuple(v for pair in reversed(pw) for v in pair)
    return torch.nn.functional.pad(x, flat)

kernel_name = 'standalone__weight_only_int_quip_2__prompt'

def setup_inputs():

    _w = (lambda a: (lambda t: t.to(torch.bfloat16) if t.is_floating_point() else t)(torch.as_tensor(a)))
    B, S, D, F = 1, 2048, 576, 4608
    nbits = max(2, min(4, int(2)))
    G = -1 if -1 > 0 else D
    D = (D // G) * G
    ng = D // G
    qmax = 1 << nbits
    qw = torch.randint(0, qmax, (D, F)).to(torch.int32)
    zp = torch.randint(0, qmax, (ng, F)).to(float)
    sc = torch.abs((lambda *s: torch.randn(*s, dtype=torch.bfloat16) * 0.05)(ng, F)).to(float) * 0.1 + 0.02
    return {
        "x": _w((lambda *s: torch.randn(*s, dtype=torch.bfloat16) * 0.05)(B, S, D)),
        "qw": _w(qw),
        "scales": _w(sc),
        "zeros": _w(zp),
    }

def reference(x, qw, scales, zeros):
    B, S, D = x.shape
    ng, F = scales.shape
    G = D // ng
    s = (lambda x, n, axis: torch.repeat_interleave(x, n, dim=axis))(scales, G, axis=0)
    z = (lambda x, n, axis: torch.repeat_interleave(x, n, dim=axis))(zeros, G, axis=0)
    w = ((lambda x, dt: x.to(dt))(qw, x.dtype) - z) * s
    return torch.einsum("bsd,df->bsf", x, w)
```

```python
NAME = "standalone__weight_only_int_quip_2__prompt"
M, K, N = 2048, 576, 4608

HEADER = """; Kernarg layout for this problem (56 bytes, ptrs only, base s[0:1]):
"""

class Asm:
    def __init__(self):
        self.lines = []
    def __call__(self, s=""):
        for l in s.split("\n"):
            self.lines.append(l)
    def emit(self, s):
        self(s)
    def text(self):
        return "\n".join(self.lines) + "\n"

def kernel_open(a, label):
    a(".text")
    a(f".globl {label}")
    a(".p2align 8")
    a(f".type {label},@function")
    a(f"{label}:")

def kernel_desc(a, label, vgpr, sgpr, accum, extra=""):
    a('.section .rodata,"a"')
    a(".p2align 6")
    a(f".amdhsa_kernel {label}")
    a(f"  .amdhsa_next_free_vgpr {vgpr}")
    a(f"  .amdhsa_next_free_sgpr {sgpr}")
    a(f"  .amdhsa_accum_offset {accum}")
    a("  .amdhsa_group_segment_fixed_size 0")
    a("  .amdhsa_kernarg_size 56")
    a("  .amdhsa_user_sgpr_count 2")
    a("  .amdhsa_user_sgpr_kernarg_segment_ptr 1")
    a("  .amdhsa_system_sgpr_workgroup_id_x 1")
    if extra:
        a(extra)
    a(".end_amdhsa_kernel")
```

```python
import sys
from common import *
a = Asm()
a(HEADER.rstrip())
a("; @launch grid=(2304,1,1) block=(256,1,1) lds=0")
a('.amdgcn_target "amdgcn-amd-amdhsa--gfx950"')
L = NAME + "_kernel"
kernel_open(a, L)
a("""
    s_cmp_ge_u32 s2, 2304
    s_cbranch_scc1 L_done
    s_load_dwordx4 s[4:7], s[0:1], 0      ; x, qw
    s_load_dwordx4 s[8:11], s[0:1], 16
    s_load_dwordx2 s[12:13], s[0:1], 32   ; out
    s_mov_b32 s14, 59652324               ; ceil(2^32/72)
    s_mul_hi_u32 s15, s2, s14             ; m_blk
    s_mul_i32 s16, s15, 72
    s_sub_u32 s16, s2, s16                ; n_blk
    s_waitcnt lgkmcnt(0)
    ; SRD x: s[20:23]
    s_mov_b32 s20, s4
    s_mov_b32 s21, s5
    s_mov_b32 s22, 2359296
    s_mov_b32 s23, 0x20000
    s_mov_b32 s24, s6
    s_mov_b32 s25, s7
    s_mov_b32 s26, 10616832
    s_mov_b32 s27, 0x20000
    s_mov_b32 s28, s8
    s_mov_b32 s29, s9
    s_mov_b32 s30, 9216
    s_mov_b32 s31, 0x20000
    s_mov_b32 s32, s10
    s_mov_b32 s33, s11
    s_mov_b32 s34, 9216
    s_mov_b32 s35, 0x20000
    s_mov_b32 s36, s12
    s_mov_b32 s37, s13
    s_mov_b32 s38, 18874368
    s_mov_b32 s39, 0x20000
    v_and_b32 v1, 63, v0          ; lane
    v_lshrrev_b32 v2, 6, v0       ; wave
    v_and_b32 v3, 15, v1          ; l&15
    v_lshrrev_b32 v4, 4, v1       ; l>>4
    s_lshl_b32 s17, s16, 6
    v_lshlrev_b32 v5, 4, v2
    v_add_u32 v5, v5, v3
    v_add_u32 v5, s17, v5         ; n
    v_lshlrev_b32 v6, 1, v5
    buffer_load_ushort v7, v6, s[28:31], 0 offen
    buffer_load_ushort v8, v6, s[32:35], 0 offen
    s_mov_b32 s18, 147456          ; 8*4608*4
    v_mul_lo_u32 v9, v4, s18
    v_lshlrev_b32 v10, 2, v5
    v_add_u32 v9, v9, v10
    s_lshl_b32 s19, s15, 6
    v_add_u32 v10, s19, v3
    s_movk_i32 s18, 1152
    v_mul_lo_u32 v10, v10, s18
    v_lshlrev_b32 v11, 4, v4
    v_add_u32 v10, v10, v11
    v_add_u32 v11, 18432, v10      ; +16 rows
    v_add_u32 v12, 36864, v10
    v_add_u32 v13, 55296, v10
""")
for i in range(16):
    a(f"    v_mov_b32 v{64+i}, 0")
a("""
    s_waitcnt vmcnt(0)
    v_lshlrev_b32 v7, 16, v7       ; scale f32
    v_lshlrev_b32 v8, 16, v8       ; zero f32
    s_mov_b32 s40, 0
    s_mov_b32 s41, 0
L_loop:
""")
for j in range(8):
    a(f"    s_add_u32 s42, s41, {j*18432}")
    a(f"    buffer_load_dword v{16+j}, v9, s[24:27], s42 offen")
for t in range(4):
    a(f"    buffer_load_dwordx4 v[{32+4*t}:{35+4*t}], v{10+t}, s[20:23], s40 offen")
a("    s_waitcnt vmcnt(4)")
for j in range(8):
    a(f"    v_cvt_f32_i32 v{16+j}, v{16+j}")
for j in range(8):
    a(f"    v_sub_f32 v{16+j}, v{16+j}, v8")
for j in range(8):
    a(f"    v_mul_f32 v{16+j}, v{16+j}, v7")
for j in range(4):
    a(f"    v_cvt_pk_bf16_f32 v{24+j}, v{16+2*j}, v{17+2*j}")
a("    s_waitcnt vmcnt(0)")
a("    s_nop 1")
for t in range(4):
    a(f"    v_mfma_f32_16x16x32_bf16 v[{64+4*t}:{67+4*t}], v[{32+4*t}:{35+4*t}], v[24:27], v[{64+4*t}:{67+4*t}]")
a("""
    s_add_u32 s40, s40, 64
    s_add_u32 s41, s41, 589824     ; 32*18432
    s_cmp_lt_u32 s40, 1152
    s_cbranch_scc1 L_loop
    s_nop 15
    v_lshlrev_b32 v14, 2, v4
    v_add_u32 v14, s19, v14
    s_movk_i32 s18, 9216
    v_mul_lo_u32 v14, v14, s18
    v_add_u32 v14, v14, v6
""")
for t in range(4):
    for r in range(0, 4, 2):
        a(f"    v_cvt_pk_bf16_f32 v16, v{64+4*t+r}, v{64+4*t+r+1}")
        a(f"    s_mov_b32 s42, {(16*t+r)*9216}")
        a(f"    buffer_store_short v16, v14, s[36:39], s42 offen")
        a(f"    s_mov_b32 s42, {(16*t+r+1)*9216}")
        a(f"    buffer_store_short_d16_hi v16, v14, s[36:39], s42 offen")
        a(f"    s_nop 1")
a("L_done:")
a("    s_endpgm")
kernel_desc(a, L, 80, 48, 80)
open(sys.argv[1] if len(sys.argv) > 1 else "cdna_kernels/" + NAME + ".s", "w").write(a.text())
```

```python
def vr(n, c=1): return [f"v{n+i}" for i in range(c)]
def ar(n, c=1): return [f"a{n+i}" for i in range(c)]
def sr(n, c=1): return [f"s{n+i}" for i in range(c)]

class I:
    __slots__ = ("text", "kind", "rd", "wr", "ldsr", "ldsw", "srcc", "note", "shared", "wide")
    def __init__(self, text, kind, rd=(), wr=(), ldsr=None, ldsw=None, srcc=(), shared=False, wide=False, note=""):
        self.text = text; self.kind = kind
        self.rd = list(rd); self.wr = list(wr)
        self.ldsr = ldsr; self.ldsw = ldsw
        self.srcc = list(srcc)
        self.shared = shared
        self.wide = wide
        self.note = note

VM = ("vload", "vstore", "dma")
DS = ("dsr", "dsw")

def insert_waits(prog, check=True):
    out = []
    vmq = []
    dsq = []
    last_write = {}
    nbar = 0
    last_read_done_bar = {}
    reads_of = {}
    def complete(q, n):
        done = q[: len(q) - n] if n < len(q) else []
        del q[: len(done)]
        return done
    def mark_done(ops):
        for op in ops:
            if op.kind == "dsr" and op.ldsr is not None:
                for ent in reads_of.get(op.ldsr, []):
                    if ent[0] is op: ent[1] = nbar
    for ins in prog:
        if ins.kind == "label":
            out.append(ins); continue
        need_vm = None; need_ds = None
        touch = set(ins.rd) | set(ins.wr)
        for k, op in enumerate(vmq):
            dep = False
            if op.kind == "vload" and touch & set(op.wr): dep = True
            if op.kind == "dma" and ins.ldsr is not None and op.ldsw == ins.ldsr: dep = True
            if op.kind == "dma" and ins.kind == "dsw" and op.ldsw == ins.ldsw: dep = True
            if dep: need_vm = k
        for k, op in enumerate(dsq):
            dep = False
            if op.kind == "dsr" and touch & set(op.wr): dep = True
            if op.kind == "dsr" and ins.ldsw is not None and op.ldsr == ins.ldsw: dep = True
            if op.kind == "dsw" and ins.kind == "barrier": dep = True
            if op.kind == "dsw" and ins.ldsr is not None and op.ldsw == ins.ldsr: dep = True
            if dep: need_ds = k
        if ins.kind == "drain":
            need_vm = len(vmq) - 1 if vmq else None
            need_ds = len(dsq) - 1 if dsq else None
        parts = []
        if need_vm is not None:
            n = min(len(vmq) - 1 - need_vm, 63)
            parts.append(f"vmcnt({n})"); complete(vmq, n)
        if need_ds is not None:
            n = min(len(dsq) - 1 - need_ds, 15)
            parts.append(f"lgkmcnt({n})"); mark_done(complete(dsq, n))
        if parts:
            out.append(I("s_waitcnt " + " ".join(parts), "wait"))
        if ins.kind == "drain":
            continue
        if check:
            if ins.kind == "dsr" and ins.shared:
                assert ins.ldsr in last_write, f"read of never written region {ins.ldsr}"
                assert last_write[ins.ldsr] < nbar, f"read of {ins.ldsr} without barrier after write: {ins.text}"
                reads_of.setdefault(ins.ldsr, []).append([ins, None])
            if ins.ldsw is not None and ins.shared:
                for ent in reads_of.get(ins.ldsw, []):
                    assert ent[1] is not None and ent[1] < nbar, f"write to {ins.ldsw} not separated from reads: {ins.text}"
                reads_of[ins.ldsw] = []
                last_write[ins.ldsw] = nbar
        if ins.kind == "barrier": nbar += 1
        if ins.kind in VM: vmq.append(ins)
        if ins.kind in DS: dsq.append(ins)
        out.append(ins)
    return out

def states(ins):
    if ins.kind == "nop":
        return int(ins.text.split()[1]) + 1
    if ins.kind == "label": return 0
    return 1

def insert_hazard_nops(prog):
    out = []
    def dist_back(pred, maxd):
        d = 0
        for p in reversed(out):
            if pred(p): return d
            d += states(p)
            if d >= maxd: return None
        return None
    nn = 0
    for ins in prog:
        need = 0
        rd, wr = set(ins.rd), set(ins.wr)
        def req(pred, n):
            nonlocal need
            d = dist_back(pred, n)
            if d is not None and d < n: need = max(need, n - d)
        if ins.kind == "mfma":
            req(lambda p: p.kind in ("valu", "perm") and set(p.wr) & (rd | set(ins.srcc)), 2)
            ab = rd - set(ins.srcc)
            req(lambda p: p.kind == "mfma" and set(p.wr) & ab, 12)
            req(lambda p: p.kind == "mfma" and set(p.wr) & set(ins.srcc) and set(p.wr) != set(ins.srcc), 10)
            if not ins.srcc:
                req(lambda p: p.kind == "mfma" and set(p.wr) & wr, 12)
        if ins.kind in ("valu", "perm", "vload", "vstore", "dsr", "dsw", "dma"):
            req(lambda p: p.kind == "mfma" and set(p.wr) & (rd | wr), 12)
        if ins.kind in ("valu", "perm"):
            req(lambda p: p.kind == "mfma" and set(p.srcc) & wr, 7)
            req(lambda p: p.kind == "vstore" and p.wide and set(p.rd) & wr, 2)
        if ins.kind == "perm":
            req(lambda p: p.kind in ("valu", "perm") and set(p.wr) & (rd | wr), 2)
        if ins.kind == "dma":
            req(lambda p: p.kind == "salu" and "m0" in p.wr, 1)
        if need:
            k = need
            while k > 0:
                t = min(k, 16)
                out.append(I(f"s_nop {t-1}", "nop")); nn += 1
                k -= t
        out.append(ins)
    return out

def render(prog):
    lines = []
    for p in prog:
        if p.kind == "label": lines.append(p.text)
        elif p.kind == "comment": lines.append("    ; " + p.text)
        else: lines.append("    " + p.text)
    return "\n".join(lines)

def stats(prog):
    from collections import Counter
    c = Counter(p.kind for p in prog)
    return dict(c)
```

```python
import sys
from common import *
from sched import *

O = dict(stflags="", xflags="", wflags="", rot="mj", la0=6, la=5, e0start=10, ts=0, midstore="x4", nobar=0, grid=256,
         skip="", e0rate=8, pfearly=0)
out = sys.argv[1]
for kv in sys.argv[2:]:
    k, v = kv.split("=")
    O[k] = int(v) if v.lstrip("-").isdigit() else v
stf = (" " + O["stflags"].replace("+", " ")) if O["stflags"] else ""
xf = (" " + O["xflags"].replace("+", " ")) if O["xflags"] else ""
wf = (" " + O["wflags"].replace("+", " ")) if O["wflags"] else ""
SKIP = set(O["skip"].split("+")) if O["skip"] else set()

vXd = [1, 2, 3, 4]; vA = [5, 6, 7, 8]; vW = [9, 10, 11, 12]
vBG, vBM, vWG, vWM = 13, 14, 15, 16
vO = [17, 18]; vOM = 19; vC = 20; vBG2 = 21; vWG2 = 22; vL = 23
TAB = {"G0": 24, "G1": 32, "M": 40}
Q = [48, 52]
NB = 6; BR = 56
NRAW = 3; RAW = 80
X8 = 128
accA, accB, accC = 160, 192, 224
SZ = {"G0": 224, "G1": 228, "M": 232}
TMP = 236
sXS, sWS, sOS, sSS, sZS = 16, 20, 24, 28, 32
sWv, sM_, sN, sSide, sT0, sT1, sT2, sT3 = 36, 37, 38, 39, 40, 41, 42, 43
sC0, sColG, sColM, sJ = 44, 45, 46, 47
sW = list(range(48, 57)); sX0 = list(range(57, 66)); sX1 = list(range(66, 75)); sMid = list(range(75, 80))
sRow = list(range(80, 96)); s202 = 96; sM0 = [97, 98, 99, 100]
LDS_G0 = 65536; LDS_G1 = 90112

def xreg(g, mt, s):
    if g < 8: return f"a[{32*g+16*mt+4*s}:{32*g+16*mt+4*s+3}]", ar(32*g+16*mt+4*s, 4)
    b = X8 + 16*mt + 4*s
    return f"v[{b}:{b+3}]", vr(b, 4)

def salu(t, rd=(), wr=()): return I(t, "salu", rd, wr)
def valu(t, rd=(), wr=()): return I(t, "valu", rd, wr)

def w_loads(q):
    b = RAW + 16 * (q % NRAW)
    r = []
    for j in range(4):
        if q < 18:
            so = sW[q % 9]; off = 256 if q >= 9 else 0
        else:
            so = sMid[q - 18]; off = 0
        o = f" offset:{off}" if off else ""
        r.append(I(f"buffer_load_dwordx4 v[{b+4*j}:{b+4*j+3}], v{vW[j]}, s[{sWS}:{sWS+3}], s{so} offen{o}{wf}", "vload",
                   rd=[f"v{vW[j]}"], wr=vr(b + 4*j, 4)))
    return r

def x_dma(g):
    buf = g % 2
    r = []
    for t in range(8):
        if t % 4 == 0:
            r.append(salu(f"s_mov_b32 m0, s{sM0[2*buf + t//4]}", wr=["m0"]))
        so = sX0[g] if t < 4 else sX1[g]
        off = (t & 3) * 1024
        o = f" offset:{off}" if off else ""
        r.append(I(f"buffer_load_dwordx4 v{vXd[t&3]}, s[{sXS}:{sXS+3}], s{so} offen{o}{xf} lds", "dma",
                   rd=[f"v{vXd[t&3]}", "m0"], ldsw=("x", buf, t // 4)))
    return r

def a_reads(g):
    buf = g % 2
    r = []
    for s in range(4):
        for mt in range(2):
            txt, regs = xreg(g, mt, s)
            r.append(I(f"ds_read_b128 {txt}, v{vA[s]} offset:{buf*8192 + mt*4096}", "dsr", rd=[f"v{vA[s]}"], wr=regs,
                       ldsr=("x", buf, mt)))
    return r

def dequant(q):
    b = RAW + 16 * (q % NRAW)
    T = TAB["G0"] if q < 9 else TAB["G1"] if q < 18 else TAB["M"]
    R = lambda j, jj: b + 4*j + jj
    r = []
    order = [0, 2, 1, 3]
    for jj in order:
        for p in range(2):
            r.append(valu(f"v_lshl_or_b32 v{R(2*p,jj)}, v{R(2*p+1,jj)}, 16, v{R(2*p,jj)}", rd=vr(R(2*p+1,jj)) + vr(R(2*p,jj)), wr=vr(R(2*p,jj))))
    for jj in order:
        for p in range(2):
            r.append(valu(f"v_mad_u32_u24 v{R(2*p,jj)}, v{R(2*p,jj)}, s{s202}, v{vC}", rd=vr(R(2*p,jj)) + vr(vC), wr=vr(R(2*p,jj))))
    for jj in order:
        for p in range(2):
            d = Q[jj & 1] + 2*(jj >> 1) + p
            r.append(valu(f"v_perm_b32 v{d}, v{T+2*jj+1}, v{T+2*jj}, v{R(2*p,jj)}", rd=vr(R(2*p,jj)) + vr(T+2*jj, 2), wr=vr(d)))
    for u in range(2):
        for p in range(2):
            r.append(I(f"v_permlane16_swap_b32 v{Q[u]+p}, v{Q[u]+2+p}", "perm", rd=vr(Q[u]+p) + vr(Q[u]+2+p), wr=vr(Q[u]+p) + vr(Q[u]+2+p)))
    for u in range(2):
        if q < 9:
            addr, off, reg = vWG, (q % 3) * 8192 + u * 1024, ("G0", q % 3)
        elif q < 18:
            rr = q - 9
            o = LDS_G1 - LDS_G0 + rr * 8192 + u * 1024
            addr, off = (vWG, o) if o < 65536 else (vWG2, o - 65536)
            reg = ("G1", rr)
        else:
            addr, off, reg = vWM, (q - 18) * 8192 + u * 128, ("M", q - 18)
        r.append(I(f"ds_write_b128 v{addr}, v[{Q[u]}:{Q[u]+3}] offset:{off}", "dsw", rd=[f"v{addr}"] + vr(Q[u], 4), ldsw=reg, shared=True))
    return r

def tables(grp):
    S = SZ[grp]; Z = SZ[grp] + 2; T = TAB[grp]
    r = []
    for jj in range(4):
        t = TMP + 8 * (jj & 1)
        zf, sf, d = t, t + 1, t + 2
        if jj & 1:
            r.append(valu(f"v_and_b32 v{zf}, 0xffff0000, v{Z+jj//2}", rd=vr(Z+jj//2), wr=vr(zf)))
            r.append(valu(f"v_and_b32 v{sf}, 0xffff0000, v{S+jj//2}", rd=vr(S+jj//2), wr=vr(sf)))
        else:
            r.append(valu(f"v_lshlrev_b32 v{zf}, 16, v{Z+jj//2}", rd=vr(Z+jj//2), wr=vr(zf)))
            r.append(valu(f"v_lshlrev_b32 v{sf}, 16, v{S+jj//2}", rd=vr(S+jj//2), wr=vr(sf)))
        for qv, lit in enumerate(["0", "1.0", "2.0", "0x40400000"]):
            r.append(valu(f"v_sub_f32 v{d+qv}, {lit}, v{zf}", rd=vr(zf), wr=vr(d+qv)))
        r.append(valu(f"v_cvt_pk_bf16_f32 v{d}, v{d}, v{d+1}", rd=vr(d, 2), wr=vr(d)))
        r.append(valu(f"v_cvt_pk_bf16_f32 v{d+2}, v{d+2}, v{d+3}", rd=vr(d+2, 2), wr=vr(d+2)))
        r.append(valu(f"v_and_b32 v{d+1}, 0xffff0000, v{d}", rd=vr(d), wr=vr(d+1)))
        r.append(valu(f"v_lshlrev_b32 v{d}, 16, v{d}", rd=vr(d), wr=vr(d)))
        r.append(valu(f"v_and_b32 v{d+3}, 0xffff0000, v{d+2}", rd=vr(d+2), wr=vr(d+3)))
        r.append(valu(f"v_lshlrev_b32 v{d+2}, 16, v{d+2}", rd=vr(d+2), wr=vr(d+2)))
        for qv in range(4):
            r.append(valu(f"v_mul_f32 v{d+qv}, v{d+qv}, v{sf}", rd=vr(d+qv) + vr(sf), wr=vr(d+qv)))
        r.append(valu(f"v_cvt_pk_bf16_f32 v{T+2*jj}, v{d}, v{d+1}", rd=vr(d, 2), wr=vr(T+2*jj)))
        r.append(valu(f"v_cvt_pk_bf16_f32 v{T+2*jj+1}, v{d+2}, v{d+3}", rd=vr(d+2, 2), wr=vr(T+2*jj+1)))
    return r

def sz_loads(grp):
    S = SZ[grp]
    addr = TMP + 16 if grp != "M" else TMP + 17
    off = " offset:128" if grp == "G1" else ""
    return [I(f"buffer_load_dwordx2 v[{S}:{S+1}], v{addr}, s[{sSS}:{sSS+3}], 0 offen{off}", "vload", rd=vr(addr), wr=vr(S, 2)),
            I(f"buffer_load_dwordx2 v[{S+2}:{S+3}], v{addr}, s[{sZS}:{sZS+3}], 0 offen{off}", "vload", rd=vr(addr), wr=vr(S+2, 2))]

def epi_g(acc, mt, off):
    r = []
    o = f" offset:{off}" if off else ""
    for rr in range(16):
        r.append(valu(f"v_cvt_pk_bf16_f32 v{acc+rr}, v{acc+rr}, v{acc+16+rr}", rd=vr(acc+rr) + vr(acc+16+rr), wr=vr(acc+rr)))
        r.append(I(f"buffer_store_dword v{acc+rr}, v{vO[mt]}, s[{sOS}:{sOS+3}], s{sRow[rr]} offen{o}{stf}", "vstore",
                   rd=vr(acc+rr) + vr(vO[mt])))
    return r

def epi_mid(acc):
    r = []
    for h in range(2):
        b = acc + 8*h
        for k in range(4):
            r.append(valu(f"v_cvt_pk_bf16_f32 v{b+k}, v{b+2*k}, v{b+2*k+1}", rd=vr(b+2*k, 2), wr=vr(b+k)))
    for h in range(2):
        b = acc + 8*h
        for k in range(2):
            r.append(I(f"v_permlane32_swap_b32 v{b+k}, v{b+2+k}", "perm", rd=vr(b+k) + vr(b+2+k), wr=vr(b+k) + vr(b+2+k)))
    for h in range(2):
        b = acc + 8*h
        o = " offset:32" if h else ""
        r.append(I(f"buffer_store_dwordx4 v[{b}:{b+3}], v{vOM}, s[{sOS}:{sOS+3}], 0 offen{o}{stf}", "vstore", rd=vr(b, 4) + vr(vOM), wide=True))
    return r

def mid_addr():
    t = vW[0]
    L = vL
    r = [
        valu(f"v_bfe_u32 v{vW[1]}, v{L}, 3, 1", rd=vr(L), wr=vr(vW[1])),
        valu(f"v_lshlrev_b32 v{t}, 4, v{vW[1]}", rd=vr(vW[1]), wr=vr(t)),
        valu(f"v_lshrrev_b32 v{vW[1]}, 5, v{L}", rd=vr(L), wr=vr(vW[1])),
        valu(f"v_lshl_add_u32 v{t}, v{vW[1]}, 3, v{t}", rd=vr(vW[1]) + vr(t), wr=vr(t)),
        valu(f"v_bfe_u32 v{vW[1]}, v{L}, 4, 1", rd=vr(L), wr=vr(vW[1])),
        valu(f"v_lshl_add_u32 v{t}, v{vW[1]}, 2, v{t}", rd=vr(vW[1]) + vr(t), wr=vr(t)),
        salu(f"s_and_b32 s{sT0}, s{sWv}, 1", wr=sr(sT0)),
        salu(f"s_lshl_b32 s{sT0}, s{sT0}, 5", wr=sr(sT0)),
        valu(f"v_add_u32 v{t}, s{sT0}, v{t}", rd=vr(t), wr=vr(t)),
        salu(f"s_movk_i32 s{sT1}, 0x4800", wr=sr(sT1)),
        valu(f"v_mul_lo_u32 v{t}, v{t}, s{sT1}", rd=vr(t), wr=vr(t)),
        valu(f"v_and_b32 v{vW[1]}, 7, v{L}", rd=vr(L), wr=vr(vW[1])),
        valu(f"v_lshl_add_u32 v{t}, v{vW[1]}, 4, v{t}", rd=vr(vW[1]) + vr(t), wr=vr(t)),
        salu(f"s_lshl_b32 s{sT0}, s{sColM}, 2", wr=sr(sT0)),
        valu(f"v_add_u32 v{t}, s{sT0}, v{t}", rd=vr(t), wr=vr(t)),
    ]
    for j in range(1, 4):
        r.append(valu(f"v_add_u32 v{vW[j]}, {j*18432}, v{t}", rd=vr(t), wr=vr(vW[j])))
    return r

L = NAME + "_kernel"
P = []
def raw(text, kind="salu", rd=(), wr=()):
    for l in text.strip("\n").split("\n"):
        l = l.strip()
        if not l or l.startswith(";"): continue
        k = kind
        if l.startswith("v_"): k = "valu"
        if l.startswith("s_nop"): k = "nop"
        P.append(I(l, k, rd, wr))

raw(f"""
    s_cmp_ge_u32 s2, {O['grid']}
    s_cbranch_scc1 L_done
""")
if O["ts"]:
    raw("s_memrealtime s[14:15]")
raw(f"""
    s_load_dwordx4 s[4:7], s[0:1], 0
    s_load_dwordx4 s[8:11], s[0:1], 16
    s_load_dwordx2 s[12:13], s[0:1], 32
    v_and_b32 v{vL}, 63, v0
    v_lshrrev_b32 v0, 6, v0
    s_and_b32 s{sJ}, s2, 7
    v_readfirstlane_b32 s{sWv}, v0
    s_lshr_b32 s{sT0}, s2, 3
    s_and_b32 s{sT1}, s{sT0}, 3
    s_lshr_b32 s{sM_}, s{sT0}, 2
    s_and_b32 s{sSide}, s{sT1}, 1
    s_lshr_b32 s{sT1}, s{sT1}, 1
    s_lshl_b32 s{sT2}, s{sJ}, 1
    s_add_u32 s{sT2}, s{sT2}, s{sT1}
    s_mul_i32 s{sT2}, s{sT2}, 288
    s_add_u32 s{sColM}, s{sT2}, 128
    s_mul_i32 s{sT3}, s{sSide}, 160
    s_add_u32 s{sColG}, s{sT2}, s{sT3}
""")
rot = O["rot"]
if rot == "mj": raw(f"s_add_u32 s{sC0}, s{sM_}, s{sJ}")
elif rot == "m": raw(f"s_mov_b32 s{sC0}, s{sM_}")
elif rot == "none": raw(f"s_mov_b32 s{sC0}, 0")
raw(f"""
    s_cmp_ge_u32 s{sC0}, 9
    s_cselect_b32 s{sT0}, 9, 0
    s_sub_u32 s{sC0}, s{sC0}, s{sT0}
""")
raw(f"""
    v_lshrrev_b32 v{TMP}, 4, v{vL}
    v_lshlrev_b32 v{TMP}, 2, v{TMP}
    v_lshl_add_u32 v{TMP}, v0, 4, v{TMP}
    s_movk_i32 s{sT0}, 0x4800
    v_mul_lo_u32 v{TMP}, v{TMP}, s{sT0}
    v_and_b32 v{TMP+1}, 15, v{vL}
    v_lshl_add_u32 v{TMP}, v{TMP+1}, 4, v{TMP}
    s_lshl_b32 s{sT0}, s{sColG}, 2
    v_add_u32 v{vW[0]}, s{sT0}, v{TMP}
    v_add_u32 v{vW[1]}, 18432, v{vW[0]}
    v_add_u32 v{vW[2]}, 36864, v{vW[0]}
    v_add_u32 v{vW[3]}, 55296, v{vW[0]}
    s_lshl_b32 s{sT0}, s{sColG}, 1
    v_lshlrev_b32 v{TMP+16}, 3, v{TMP+1}
    v_add_u32 v{TMP+16}, s{sT0}, v{TMP+16}
    v_and_b32 v{TMP+17}, 7, v{vL}
    v_lshlrev_b32 v{TMP+17}, 3, v{TMP+17}
    s_lshl_b32 s{sT0}, s{sColM}, 1
    v_add_u32 v{TMP+17}, s{sT0}, v{TMP+17}
    s_lshl_b32 s{sT0}, s{sM_}, 8
    v_lshrrev_b32 v{TMP}, 3, v{vL}
    v_lshl_add_u32 v{TMP}, v0, 5, v{TMP}
    v_add_u32 v{TMP}, s{sT0}, v{TMP}
    s_movk_i32 s{sT0}, 1152
    v_mul_lo_u32 v{TMP}, v{TMP}, s{sT0}
    v_lshrrev_b32 v{TMP+1}, 4, v{vL}
    v_and_b32 v{TMP+2}, 7, v{vL}
    v_xor_b32 v{TMP+1}, v{TMP+1}, v{TMP+2}
    v_lshl_add_u32 v{vXd[0]}, v{TMP+1}, 4, v{TMP}
    v_xor_b32 v{TMP+1}, 4, v{TMP+1}
    v_lshl_add_u32 v{vXd[1]}, v{TMP+1}, 4, v{TMP}
    v_add_u32 v{vXd[2]}, 16384, v{vXd[0]}
    v_add_u32 v{vXd[3]}, 24576, v{vXd[1]}
    v_add_u32 v{vXd[1]}, 8192, v{vXd[1]}
""")
raw(f"s_mul_i32 s{sT2}, s{sSide}, 147456\ns_sub_u32 s{sT3}, 147456, s{sT2}\ns_mov_b32 s{sT0}, s{sC0}")
def chunk_regs(i):
    t = f"""
    s_mul_i32 s{sW[i]}, s{sT0}, 1179648
    s_lshl_b32 s{sT1}, s{sT0}, 7
    s_add_u32 s{sX0[i]}, s{sT1}, s{sT2}
    s_add_u32 s{sX1[i]}, s{sT1}, s{sT3}
    """
    if i < 8:
        t += f"""
    s_add_u32 s{sT0}, s{sT0}, 1
    s_cmp_eq_u32 s{sT0}, 9
    s_cselect_b32 s{sT0}, 0, s{sT0}
    """
    return t
for i in range(9): raw(chunk_regs(i))
raw(f"""
    s_lshl_b32 s{sT0}, s{sWv}, 14
    s_mov_b32 s{sM0[0]}, s{sT0}
    s_add_u32 s{sM0[1]}, s{sT0}, 4096
    s_add_u32 s{sM0[2]}, s{sT0}, 8192
    s_add_u32 s{sM0[3]}, s{sT0}, 12288
    s_waitcnt lgkmcnt(0)
    s_mov_b32 s{sSS}, s8
    s_mov_b32 s{sSS+1}, s9
    s_mov_b32 s{sSS+2}, 9216
    s_mov_b32 s{sSS+3}, 0x20000
    s_mov_b32 s{sZS}, s10
    s_mov_b32 s{sZS+1}, s11
    s_mov_b32 s{sZS+2}, 9216
    s_mov_b32 s{sZS+3}, 0x20000
    s_mov_b32 s{sWS}, s6
    s_mov_b32 s{sWS+1}, s7
    s_mov_b32 s{sWS+2}, 10616832
    s_mov_b32 s{sWS+3}, 0x20000
    s_mov_b32 s{sXS}, s4
    s_mov_b32 s{sXS+1}, s5
    s_mov_b32 s{sXS+2}, 2359296
    s_mov_b32 s{sXS+3}, 0x20000
""")
P += sz_loads("G0")
P += w_loads(0)
P += x_dma(0)
P += w_loads(1)
P += sz_loads("G1"); P += sz_loads("M")
P += x_dma(1)
P += w_loads(2)
raw(f"""
    s_mov_b32 s{sOS}, s12
    s_mov_b32 s{sOS+1}, s13
    s_mov_b32 s{sOS+2}, 18874368
    s_mov_b32 s{sOS+3}, 0x20000
    s_movk_i32 s{s202}, 0x202
    v_mov_b32 v{vC}, 0x01000100
    v_and_b32 v{TMP}, 31, v{vL}
    v_lshlrev_b32 v{TMP+1}, 7, v{TMP}
    v_lshl_add_u32 v{TMP+1}, v0, 14, v{TMP+1}
    v_bfe_u32 v{TMP+2}, v{vL}, 1, 3
    v_lshrrev_b32 v{TMP+3}, 5, v{vL}
    v_xor_b32 v{TMP+2}, v{TMP+2}, v{TMP+3}
    v_lshl_add_u32 v{vA[0]}, v{TMP+2}, 4, v{TMP+1}
    v_xor_b32 v{vA[1]}, 32, v{vA[0]}
    v_xor_b32 v{vA[2]}, 64, v{vA[0]}
    v_xor_b32 v{vA[3]}, 96, v{vA[0]}
    v_bfe_u32 v{TMP+1}, v{vL}, 1, 3
    v_and_b32 v{TMP+2}, 1, v{vL}
    v_lshl_or_b32 v{TMP+1}, v{TMP+2}, 3, v{TMP+1}
    v_and_b32 v{TMP+2}, 48, v{vL}
    v_or_b32 v{TMP+1}, v{TMP+1}, v{TMP+2}
    v_lshlrev_b32 v{TMP+1}, 4, v{TMP+1}
    v_add_u32 v{vBG}, {LDS_G0}, v{TMP+1}
    v_add_u32 v{vBG2}, {LDS_G0 + 65536}, v{TMP+1}
    v_and_b32 v{TMP+1}, 7, v{vL}
    v_bfe_u32 v{TMP+2}, v{vL}, 4, 1
    v_lshl_or_b32 v{TMP+1}, v{TMP+2}, 3, v{TMP+1}
    v_bfe_u32 v{TMP+2}, v{vL}, 3, 1
    v_lshl_or_b32 v{TMP+1}, v{TMP+2}, 4, v{TMP+1}
    v_and_b32 v{TMP+2}, 32, v{vL}
    v_or_b32 v{TMP+1}, v{TMP+1}, v{TMP+2}
    v_lshlrev_b32 v{TMP+1}, 4, v{TMP+1}
    v_lshl_add_u32 v{TMP+1}, v0, 11, v{TMP+1}
    v_add_u32 v{vWG}, {LDS_G0}, v{TMP+1}
    v_add_u32 v{vWG2}, {LDS_G0 + 65536}, v{TMP+1}
""")
P += tables("G0")
P += dequant(0)
P += w_loads(3)
raw(f"""
    v_bfe_u32 v{TMP+1}, v{vL}, 2, 3
    v_bfe_u32 v{TMP+2}, v{vL}, 1, 1
    v_xor_b32 v{TMP+1}, v{TMP+1}, v{TMP+2}
    v_lshl_or_b32 v{TMP+1}, v{TMP+2}, 4, v{TMP+1}
    v_and_b32 v{TMP+2}, 1, v{vL}
    v_lshl_or_b32 v{TMP+1}, v{TMP+2}, 3, v{TMP+1}
    v_and_b32 v{TMP+2}, 32, v{vL}
    v_or_b32 v{TMP+1}, v{TMP+1}, v{TMP+2}
    v_lshlrev_b32 v{vBM}, 4, v{TMP+1}
    v_and_b32 v{TMP+1}, 7, v{vL}
    v_bfe_u32 v{TMP+2}, v{vL}, 4, 1
    v_xor_b32 v{TMP+1}, v{TMP+1}, v{TMP+2}
    v_lshl_or_b32 v{TMP+1}, v{TMP+2}, 4, v{TMP+1}
    v_and_b32 v{TMP+2}, 32, v{vL}
    v_or_b32 v{TMP+1}, v{TMP+1}, v{TMP+2}
    v_lshlrev_b32 v{TMP+1}, 4, v{TMP+1}
    v_bfe_u32 v{TMP+2}, v{vL}, 3, 1
    v_lshl_add_u32 v{TMP+1}, v{TMP+2}, 10, v{TMP+1}
    v_lshl_add_u32 v{vWM}, v0, 11, v{TMP+1}
    s_lshl_b32 s{sT0}, s{sM_}, 8
    s_lshl_b32 s{sT1}, s{sWv}, 5
    s_add_u32 s{sT0}, s{sT0}, s{sT1}
    s_lshl_b32 s{sT1}, s{sSide}, 7
    s_add_u32 s{sT2}, s{sT0}, s{sT1}
    s_xor_b32 s{sT1}, s{sT1}, 128
    s_add_u32 s{sT3}, s{sT0}, s{sT1}
    s_mul_i32 s{sT2}, s{sT2}, 9216
    s_mul_i32 s{sT3}, s{sT3}, 9216
    v_lshrrev_b32 v{TMP+1}, 5, v{vL}
    v_mul_u32_u24 v{TMP+2}, 36864, v{TMP+1}
    v_and_b32 v{TMP+3}, 31, v{vL}
    v_lshl_add_u32 v{TMP+2}, v{TMP+3}, 2, v{TMP+2}
    s_lshl_b32 s{sT0}, s{sColG}, 1
    v_add_u32 v{TMP+2}, s{sT0}, v{TMP+2}
    v_add_u32 v{vO[0]}, s{sT2}, v{TMP+2}
    v_add_u32 v{vO[1]}, s{sT3}, v{TMP+2}
    v_mul_u32_u24 v{TMP+2}, 9216, v{TMP+3}
    v_lshl_add_u32 v{TMP+2}, v{TMP+1}, 4, v{TMP+2}
    s_lshl_b32 s{sT0}, s{sColM}, 1
    s_add_u32 s{sT0}, s{sT0}, s{sT2}
    v_add_u32 v{vOM}, s{sT0}, v{TMP+2}
""")
P += dequant(1)

def mid_soffsets():
    r = []
    for i in range(5):
        r += [salu(f"s_lshr_b32 s{sT0}, s{sWv}, 1"), salu(f"s_add_u32 s{sT0}, s{sT0}, {2*i}"),
              salu(f"s_add_u32 s{sT0}, s{sT0}, s{sC0}"), salu(f"s_cmp_ge_u32 s{sT0}, 9"),
              salu(f"s_cselect_b32 s{sT1}, 9, 0"), salu(f"s_sub_u32 s{sT0}, s{sT0}, s{sT1}"),
              salu(f"s_mul_i32 s{sMid[i]}, s{sT0}, 1179648")]
    return r
def row_offsets():
    return [salu(f"s_mov_b32 s{sRow[r]}, {(8*(r>>2) + (r&3))*9216}") for r in range(16)]

MF = []
frags = []
def add_frag(addr, off, region, pub):
    frags.append(dict(addr=addr, off=off, region=region, pub=pub, first=None, last=None)); return len(frags) - 1
def g_frag(q, s, u):
    if q < 9:
        return vBG, (q % 3) * 8192 + (2*s + u) * 1024, ("G0", q % 3)
    rr = q - 9
    o = LDS_G1 - LDS_G0 + rr * 8192 + (2*s + u) * 1024
    return (vBG, o, ("G1", rr)) if o < 65536 else (vBG2, o - 65536, ("G1", rr))
def add_mfma(g, acc, xa, n, first, swapped=False):
    MF.append(dict(g=g, acc=acc, xa=xa, n=n, first=first, swapped=swapped))
    f = frags[n]
    if f["first"] is None: f["first"] = len(MF) - 1
    f["last"] = len(MF) - 1
for g in range(9):
    for s in range(4):
        for u in range(2):
            n = add_frag(*g_frag(g, s, u), pub=max(g - 1, 0))
            for mt in range(2):
                add_mfma(g, (accA if mt == 0 else accB) + 16*u, xreg(g, mt, s), n, g == 0 and s == 0)
for r in range(9):
    for s in range(4):
        for u in range(2):
            n = add_frag(*g_frag(9 + r, s, u), pub=8 + r)
            add_mfma(9 + r, accC + 16*u, xreg(r, 1, s), n, r == 0 and s == 0)
for r in range(9):
    for s in range(4):
        for u in range(2):
            n = add_frag(*g_frag(9 + r, s, u), pub=8 + r)
            add_mfma(18 + r, accA + 16*u, xreg(r, 0, s), n, r == 0 and s == 0)
BETA_M = 25
for ks in range(36):
    n = add_frag(vBM, ks * 1024, ("M", ks >> 3), pub=BETA_M)
    add_mfma(27 + (ks >> 2), accB, xreg(ks >> 2, 0, ks & 3), n, ks == 0, swapped=True)
round_start = {}
for p, m in enumerate(MF):
    round_start.setdefault(m["g"], p)
anchor = {}
for n, f in enumerate(frags):
    la = O["la0"] if f["first"] < round_start[9] else O["la"]
    e = round_start[f["pub"]]
    if n >= NB: e = max(e, frags[n - NB]["last"] + 1)
    p = max(f["first"] - la, e)
    anchor.setdefault(p, []).append(n)
def b_read(n):
    f = frags[n]; b = BR + 4 * (n % NB)
    return I(f"ds_read_b128 v[{b}:{b+3}], v{f['addr']} offset:{f['off']}", "dsr", rd=[f"v{f['addr']}"], wr=vr(b, 4), ldsr=f["region"], shared=True)
def mfma(p):
    m = MF[p]; b = BR + 4 * (m["n"] % NB)
    acc = m["acc"]; xt, xr = m["xa"]
    c = "0" if m["first"] else f"v[{acc}:{acc+15}]"
    bt = f"v[{b}:{b+3}]"
    a_, b_ = (bt, xt) if m["swapped"] else (xt, bt)
    return I(f"v_mfma_f32_32x32x16_bf16 v[{acc}:{acc+15}], {a_}, {b_}, {c}", "mfma",
             rd=xr + vr(b, 4) + ([] if m["first"] else vr(acc, 16)), wr=vr(acc, 16), srcc=[] if m["first"] else vr(acc, 16))

load_round = {q: q - 4 for q in range(4, 18)}
load_round.update({18: 14, 19: 15, 20: 16, 21: 19, 22: 20})
deq_round = {q: q - 2 for q in range(2, 18)}
deq_round.update({18: 18, 19: 19, 20: 20, 21: 22, 22: 23})
E0 = epi_g(accA, 0, 0) + epi_g(accB, 1, 0)
E1 = epi_g(accC, 1, 128)
E2 = epi_g(accA, 0, 128)
extra = {0: tables("G1"), 1: tables("M"), 2: mid_soffsets() + row_offsets()}
pre = {}; fill = {}
for g in range(36):
    pr = []; fl = []
    if g <= 8: pr += a_reads(g)
    if g <= 16 or g == BETA_M:
        pr.append(I("s_barrier", "barrier"))
    loads = [q for q, r in load_round.items() if r == g]
    deqs = [q for q, r in deq_round.items() if r == g]
    late_loads = []
    for q in loads:
        if (q - NRAW) in deqs: late_loads += w_loads(q)
        else: fl += w_loads(q)
    if g == 13: fl += mid_addr()
    if g + 2 <= 8: fl += x_dma(g + 2)
    for q in deqs: fl += dequant(q)
    fl += late_loads
    fl += extra.get(g, [])
    if O["e0start"] <= g:
        k = (g - O["e0start"]) * O["e0rate"]
        if k < len(E0): fl += E0[k:k + O["e0rate"]]
    if 18 <= g <= 25: fl += E1[(g - 18) * 4:(g - 17) * 4]
    if 28 <= g <= 35: fl += E2[(g - 28) * 4:(g - 27) * 4]
    pre[g] = pr; fill[g] = fl
assert (17 - O["e0start"] + 1) * O["e0rate"] >= 32, "E0 mt0 must be finished before round 18"
assert (26 - O["e0start"] + 1) * O["e0rate"] >= 64

for g in range(36):
    p0 = round_start[g]; p1 = round_start.get(g + 1, len(MF))
    P += pre[g]
    n = p1 - p0; fl = fill[g]
    for k in range(n):
        p = p0 + k
        for fr in anchor.get(p, []): P.append(b_read(fr))
        P.append(mfma(p))
        P += fl[k * len(fl) // n:(k + 1) * len(fl) // n]
P += epi_mid(accB)

if O["ts"]:
    raw(f"""
    s_memrealtime s[4:5]
    s_load_dwordx2 s[6:7], s[0:1], 48
    s_waitcnt lgkmcnt(0)
    s_mov_b32 s8, s6
    s_mov_b32 s9, s7
    s_mov_b32 s10, 0x10000000
    s_mov_b32 s11, 0x20000
    v_mov_b32 v0, s14
    v_mov_b32 v1, s15
    v_mov_b32 v2, s4
    v_mov_b32 v3, s5
    s_lshl_b32 s12, s2, 2
    s_add_u32 s12, s12, s{sWv}
    s_lshl_b32 s12, s12, 5
    v_mov_b32 v4, s12
    v_mov_b32 v5, 0
    v_mov_b32 v6, 0
    v_mov_b32 v7, 0
    v_mov_b32 v8, 0
    """)
    P.append(I("buffer_store_dwordx4 v[0:3], v4, s[8:11], 0 offen", "vstore", rd=vr(0, 5)))
    P.append(I("buffer_store_dwordx4 v[5:8], v4, s[8:11], 0 offen offset:16", "vstore", rd=vr(4, 5)))
P.append(I("L_done:", "label"))
P.append(I("s_endpgm", "salu"))

P = insert_waits(P)
P = insert_hazard_nops(P)
a = Asm()
a(HEADER.rstrip())
a(f"; @launch grid=({O['grid']},1,1) block=(256,1,1) lds=163840")
a('.amdgcn_target "amdgcn-amd-amdhsa--gfx950"')
kernel_open(a, L)
a(render(P))
kernel_desc(a, L, 512, 102, 256, extra="  .amdhsa_float_denorm_mode_32 3")
open(out, "w").write(a.text())
print(stats(P), "total", len(P))
```

```python
import sys
from common import *
from sched import *

O = dict(stflags="", xflags="", wflags="", rot="mj", la0=6, la=5, e0start=10, ts=0, midstore="x4", nobar=0, grid=256,
         skip="", e0rate=8, pfearly=0, map="n8")
out = sys.argv[1]
for kv in sys.argv[2:]:
    k, v = kv.split("=")
    O[k] = int(v) if v.lstrip("-").isdigit() else v
stf = (" " + O["stflags"].replace("+", " ")) if O["stflags"] else ""
xf = (" " + O["xflags"].replace("+", " ")) if O["xflags"] else ""
wf = (" " + O["wflags"].replace("+", " ")) if O["wflags"] else ""
SKIP = set(O["skip"].split("+")) if O["skip"] else set()

vXd = [1, 2, 3, 4]; vA = [5, 6, 7, 8]; vW = [9, 10, 11, 12]
vBG, vBM, vWG, vWM = 13, 14, 15, 16
vO = [17, 18]; vOM = 19; vC = 20; vBG2 = 21; vWG2 = 22; vL = 23
TAB = {"G0": 24, "G1": 32, "M": 40}
Q = [48, 52]
NB = 6; BR = 56
NRAW = 3; RAW = 80
X8 = 128
accA, accB, accC = 160, 192, 224
SZ = {"G0": 224, "G1": 228, "M": 232}
TMP = 236
sXS, sWS, sOS, sSS, sZS = 16, 20, 24, 28, 32
sWv, sM_, sN, sSide, sT0, sT1, sT2, sT3 = 36, 37, 38, 39, 40, 41, 42, 43
sC0, sColG, sColM, sJ = 44, 45, 46, 47
sW = list(range(48, 57)); sX0 = list(range(57, 66)); sX1 = list(range(66, 75)); sMid = list(range(75, 80))
sRow = list(range(80, 96)); s202 = 96; sM0 = [97, 98, 99, 100]
LDS_G0 = 65536; LDS_G1 = 90112

def xreg(g, mt, s):
    if g < 8: return f"a[{32*g+16*mt+4*s}:{32*g+16*mt+4*s+3}]", ar(32*g+16*mt+4*s, 4)
    b = X8 + 16*mt + 4*s
    return f"v[{b}:{b+3}]", vr(b, 4)

def salu(t, rd=(), wr=()): return I(t, "salu", rd, wr)
def valu(t, rd=(), wr=()): return I(t, "valu", rd, wr)

def w_loads(q):
    b = RAW + 16 * (q % NRAW)
    r = []
    for j in range(4):
        if q < 18:
            so = sW[q % 9]; off = 256 if q >= 9 else 0
        else:
            so = sMid[q - 18]; off = 0
        o = f" offset:{off}" if off else ""
        r.append(I(f"buffer_load_dwordx4 v[{b+4*j}:{b+4*j+3}], v{vW[j]}, s[{sWS}:{sWS+3}], s{so} offen{o}{wf}", "vload",
                   rd=[f"v{vW[j]}"], wr=vr(b + 4*j, 4)))
    return r

def x_dma(g):
    buf = g % 2
    r = []
    for t in range(8):
        if t % 4 == 0:
            r.append(salu(f"s_mov_b32 m0, s{sM0[2*buf + t//4]}", wr=["m0"]))
        so = sX0[g] if t < 4 else sX1[g]
        off = (t & 3) * 1024
        o = f" offset:{off}" if off else ""
        r.append(I(f"buffer_load_dwordx4 v{vXd[t&3]}, s[{sXS}:{sXS+3}], s{so} offen{o}{xf} lds", "dma",
                   rd=[f"v{vXd[t&3]}", "m0"], ldsw=("x", buf, t // 4)))
    return r

def a_reads(g):
    buf = g % 2
    r = []
    for s in range(4):
        for mt in range(2):
            txt, regs = xreg(g, mt, s)
            r.append(I(f"ds_read_b128 {txt}, v{vA[s]} offset:{buf*8192 + mt*4096}", "dsr", rd=[f"v{vA[s]}"], wr=regs,
                       ldsr=("x", buf, mt)))
    return r

def dequant(q):
    b = RAW + 16 * (q % NRAW)
    T = TAB["G0"] if q < 9 else TAB["G1"] if q < 18 else TAB["M"]
    R = lambda j, jj: b + 4*j + jj
    r = []
    order = [0, 2, 1, 3]
    for jj in order:
        for p in range(2):
            r.append(valu(f"v_lshl_or_b32 v{R(2*p,jj)}, v{R(2*p+1,jj)}, 16, v{R(2*p,jj)}", rd=vr(R(2*p+1,jj)) + vr(R(2*p,jj)), wr=vr(R(2*p,jj))))
    for jj in order:
        for p in range(2):
            r.append(valu(f"v_mad_u32_u24 v{R(2*p,jj)}, v{R(2*p,jj)}, s{s202}, v{vC}", rd=vr(R(2*p,jj)) + vr(vC), wr=vr(R(2*p,jj))))
    for jj in order:
        for p in range(2):
            d = Q[jj & 1] + 2*(jj >> 1) + p
            r.append(valu(f"v_perm_b32 v{d}, v{T+2*jj+1}, v{T+2*jj}, v{R(2*p,jj)}", rd=vr(R(2*p,jj)) + vr(T+2*jj, 2), wr=vr(d)))
    for u in range(2):
        for p in range(2):
            r.append(I(f"v_permlane16_swap_b32 v{Q[u]+p}, v{Q[u]+2+p}", "perm", rd=vr(Q[u]+p) + vr(Q[u]+2+p), wr=vr(Q[u]+p) + vr(Q[u]+2+p)))
    for u in range(2):
        if q < 9:
            addr, off, reg = vWG, (q % 3) * 8192 + u * 1024, ("G0", q % 3)
        elif q < 18:
            rr = q - 9
            o = LDS_G1 - LDS_G0 + rr * 8192 + u * 1024
            addr, off = (vWG, o) if o < 65536 else (vWG2, o - 65536)
            reg = ("G1", rr)
        else:
            addr, off, reg = vWM, (q - 18) * 8192 + u * 128, ("M", q - 18)
        r.append(I(f"ds_write_b128 v{addr}, v[{Q[u]}:{Q[u]+3}] offset:{off}", "dsw", rd=[f"v{addr}"] + vr(Q[u], 4), ldsw=reg, shared=True))
    return r

def tables(grp):
    S = SZ[grp]; Z = SZ[grp] + 2; T = TAB[grp]
    r = []
    for jj in range(4):
        t = TMP + 8 * (jj & 1)
        zf, sf, d = t, t + 1, t + 2
        if jj & 1:
            r.append(valu(f"v_and_b32 v{zf}, 0xffff0000, v{Z+jj//2}", rd=vr(Z+jj//2), wr=vr(zf)))
            r.append(valu(f"v_and_b32 v{sf}, 0xffff0000, v{S+jj//2}", rd=vr(S+jj//2), wr=vr(sf)))
        else:
            r.append(valu(f"v_lshlrev_b32 v{zf}, 16, v{Z+jj//2}", rd=vr(Z+jj//2), wr=vr(zf)))
            r.append(valu(f"v_lshlrev_b32 v{sf}, 16, v{S+jj//2}", rd=vr(S+jj//2), wr=vr(sf)))
        for qv, lit in enumerate(["0", "1.0", "2.0", "0x40400000"]):
            r.append(valu(f"v_sub_f32 v{d+qv}, {lit}, v{zf}", rd=vr(zf), wr=vr(d+qv)))
        r.append(valu(f"v_cvt_pk_bf16_f32 v{d}, v{d}, v{d+1}", rd=vr(d, 2), wr=vr(d)))
        r.append(valu(f"v_cvt_pk_bf16_f32 v{d+2}, v{d+2}, v{d+3}", rd=vr(d+2, 2), wr=vr(d+2)))
        r.append(valu(f"v_and_b32 v{d+1}, 0xffff0000, v{d}", rd=vr(d), wr=vr(d+1)))
        r.append(valu(f"v_lshlrev_b32 v{d}, 16, v{d}", rd=vr(d), wr=vr(d)))
        r.append(valu(f"v_and_b32 v{d+3}, 0xffff0000, v{d+2}", rd=vr(d+2), wr=vr(d+3)))
        r.append(valu(f"v_lshlrev_b32 v{d+2}, 16, v{d+2}", rd=vr(d+2), wr=vr(d+2)))
        for qv in range(4):
            r.append(valu(f"v_mul_f32 v{d+qv}, v{d+qv}, v{sf}", rd=vr(d+qv) + vr(sf), wr=vr(d+qv)))
        r.append(valu(f"v_cvt_pk_bf16_f32 v{T+2*jj}, v{d}, v{d+1}", rd=vr(d, 2), wr=vr(T+2*jj)))
        r.append(valu(f"v_cvt_pk_bf16_f32 v{T+2*jj+1}, v{d+2}, v{d+3}", rd=vr(d+2, 2), wr=vr(T+2*jj+1)))
    return r

def sz_loads(grp):
    S = SZ[grp]
    addr = TMP + 16 if grp != "M" else TMP + 17
    off = " offset:128" if grp == "G1" else ""
    return [I(f"buffer_load_dwordx2 v[{S}:{S+1}], v{addr}, s[{sSS}:{sSS+3}], 0 offen{off}", "vload", rd=vr(addr), wr=vr(S, 2)),
            I(f"buffer_load_dwordx2 v[{S+2}:{S+3}], v{addr}, s[{sZS}:{sZS+3}], 0 offen{off}", "vload", rd=vr(addr), wr=vr(S+2, 2))]

def epi_g(acc, mt, off):
    r = []
    o = f" offset:{off}" if off else ""
    for rr in range(16):
        r.append(valu(f"v_cvt_pk_bf16_f32 v{acc+rr}, v{acc+rr}, v{acc+16+rr}", rd=vr(acc+rr) + vr(acc+16+rr), wr=vr(acc+rr)))
        r.append(I(f"buffer_store_dword v{acc+rr}, v{vO[mt]}, s[{sOS}:{sOS+3}], s{sRow[rr]} offen{o}{stf}", "vstore",
                   rd=vr(acc+rr) + vr(vO[mt])))
    return r

def epi_mid(acc):
    r = []
    for h in range(2):
        b = acc + 8*h
        for k in range(4):
            r.append(valu(f"v_cvt_pk_bf16_f32 v{b+k}, v{b+2*k}, v{b+2*k+1}", rd=vr(b+2*k, 2), wr=vr(b+k)))
    for h in range(2):
        b = acc + 8*h
        for k in range(2):
            r.append(I(f"v_permlane32_swap_b32 v{b+k}, v{b+2+k}", "perm", rd=vr(b+k) + vr(b+2+k), wr=vr(b+k) + vr(b+2+k)))
    for h in range(2):
        b = acc + 8*h
        o = " offset:32" if h else ""
        r.append(I(f"buffer_store_dwordx4 v[{b}:{b+3}], v{vOM}, s[{sOS}:{sOS+3}], 0 offen{o}{stf}", "vstore", rd=vr(b, 4) + vr(vOM), wide=True))
    return r

def mid_addr():
    t = vW[0]
    L = vL
    r = [
        valu(f"v_bfe_u32 v{vW[1]}, v{L}, 3, 1", rd=vr(L), wr=vr(vW[1])),
        valu(f"v_lshlrev_b32 v{t}, 4, v{vW[1]}", rd=vr(vW[1]), wr=vr(t)),
        valu(f"v_lshrrev_b32 v{vW[1]}, 5, v{L}", rd=vr(L), wr=vr(vW[1])),
        valu(f"v_lshl_add_u32 v{t}, v{vW[1]}, 3, v{t}", rd=vr(vW[1]) + vr(t), wr=vr(t)),
        valu(f"v_bfe_u32 v{vW[1]}, v{L}, 4, 1", rd=vr(L), wr=vr(vW[1])),
        valu(f"v_lshl_add_u32 v{t}, v{vW[1]}, 2, v{t}", rd=vr(vW[1]) + vr(t), wr=vr(t)),
        salu(f"s_and_b32 s{sT0}, s{sWv}, 1", wr=sr(sT0)),
        salu(f"s_lshl_b32 s{sT0}, s{sT0}, 5", wr=sr(sT0)),
        valu(f"v_add_u32 v{t}, s{sT0}, v{t}", rd=vr(t), wr=vr(t)),
        salu(f"s_movk_i32 s{sT1}, 0x4800", wr=sr(sT1)),
        valu(f"v_mul_lo_u32 v{t}, v{t}, s{sT1}", rd=vr(t), wr=vr(t)),
        valu(f"v_and_b32 v{vW[1]}, 7, v{L}", rd=vr(L), wr=vr(vW[1])),
        valu(f"v_lshl_add_u32 v{t}, v{vW[1]}, 4, v{t}", rd=vr(vW[1]) + vr(t), wr=vr(t)),
        salu(f"s_lshl_b32 s{sT0}, s{sColM}, 2", wr=sr(sT0)),
        valu(f"v_add_u32 v{t}, s{sT0}, v{t}", rd=vr(t), wr=vr(t)),
    ]
    for j in range(1, 4):
        r.append(valu(f"v_add_u32 v{vW[j]}, {j*18432}, v{t}", rd=vr(t), wr=vr(vW[j])))
    return r

L = NAME + "_kernel"
P = []
def raw(text, kind="salu", rd=(), wr=()):
    for l in text.strip("\n").split("\n"):
        l = l.strip()
        if not l or l.startswith(";"): continue
        k = kind
        if l.startswith("v_"): k = "valu"
        if l.startswith("s_nop"): k = "nop"
        P.append(I(l, k, rd, wr))

raw(f"""
    s_cmp_ge_u32 s2, {O['grid']}
    s_cbranch_scc1 L_done
""")
if O["ts"]:
    raw("s_memrealtime s[14:15]")
raw(f"""
    s_load_dwordx4 s[4:7], s[0:1], 0
    s_load_dwordx4 s[8:11], s[0:1], 16
    s_load_dwordx2 s[12:13], s[0:1], 32
    v_and_b32 v{vL}, 63, v0
    v_lshrrev_b32 v0, 6, v0
    s_and_b32 s{sJ}, s2, 7
    v_readfirstlane_b32 s{sWv}, v0
    s_lshr_b32 s{sT0}, s2, 3
    s_and_b32 s{sT1}, s{sT0}, 3
    s_lshr_b32 s{sM_}, s{sT0}, 2
""")
if O["map"] == "m8":
    raw(f"""
    s_mov_b32 s{sT2}, s{sJ}
    s_mov_b32 s{sJ}, s{sM_}
    s_mov_b32 s{sM_}, s{sT2}
""")
raw(f"""
    s_and_b32 s{sSide}, s{sT1}, 1
    s_lshr_b32 s{sT1}, s{sT1}, 1
    s_lshl_b32 s{sT2}, s{sJ}, 1
    s_add_u32 s{sT2}, s{sT2}, s{sT1}
    s_mul_i32 s{sT2}, s{sT2}, 288
    s_add_u32 s{sColM}, s{sT2}, 128
    s_mul_i32 s{sT3}, s{sSide}, 160
    s_add_u32 s{sColG}, s{sT2}, s{sT3}
""")
rot = O["rot"]
if rot == "mj": raw(f"s_add_u32 s{sC0}, s{sM_}, s{sJ}")
elif rot == "m": raw(f"s_mov_b32 s{sC0}, s{sM_}")
elif rot == "none": raw(f"s_mov_b32 s{sC0}, 0")
raw(f"""
    s_cmp_ge_u32 s{sC0}, 9
    s_cselect_b32 s{sT0}, 9, 0
    s_sub_u32 s{sC0}, s{sC0}, s{sT0}
""")
raw(f"""
    v_lshrrev_b32 v{TMP}, 4, v{vL}
    v_lshlrev_b32 v{TMP}, 2, v{TMP}
    v_lshl_add_u32 v{TMP}, v0, 4, v{TMP}
    s_movk_i32 s{sT0}, 0x4800
    v_mul_lo_u32 v{TMP}, v{TMP}, s{sT0}
    v_and_b32 v{TMP+1}, 15, v{vL}
    v_lshl_add_u32 v{TMP}, v{TMP+1}, 4, v{TMP}
    s_lshl_b32 s{sT0}, s{sColG}, 2
    v_add_u32 v{vW[0]}, s{sT0}, v{TMP}
    v_add_u32 v{vW[1]}, 18432, v{vW[0]}
    v_add_u32 v{vW[2]}, 36864, v{vW[0]}
    v_add_u32 v{vW[3]}, 55296, v{vW[0]}
    s_lshl_b32 s{sT0}, s{sColG}, 1
    v_lshlrev_b32 v{TMP+16}, 3, v{TMP+1}
    v_add_u32 v{TMP+16}, s{sT0}, v{TMP+16}
    v_and_b32 v{TMP+17}, 7, v{vL}
    v_lshlrev_b32 v{TMP+17}, 3, v{TMP+17}
    s_lshl_b32 s{sT0}, s{sColM}, 1
    v_add_u32 v{TMP+17}, s{sT0}, v{TMP+17}
    s_lshl_b32 s{sT0}, s{sM_}, 8
    v_lshrrev_b32 v{TMP}, 3, v{vL}
    v_lshl_add_u32 v{TMP}, v0, 5, v{TMP}
    v_add_u32 v{TMP}, s{sT0}, v{TMP}
    s_movk_i32 s{sT0}, 1152
    v_mul_lo_u32 v{TMP}, v{TMP}, s{sT0}
    v_lshrrev_b32 v{TMP+1}, 4, v{vL}
    v_and_b32 v{TMP+2}, 7, v{vL}
    v_xor_b32 v{TMP+1}, v{TMP+1}, v{TMP+2}
    v_lshl_add_u32 v{vXd[0]}, v{TMP+1}, 4, v{TMP}
    v_xor_b32 v{TMP+1}, 4, v{TMP+1}
    v_lshl_add_u32 v{vXd[1]}, v{TMP+1}, 4, v{TMP}
    v_add_u32 v{vXd[2]}, 16384, v{vXd[0]}
    v_add_u32 v{vXd[3]}, 24576, v{vXd[1]}
    v_add_u32 v{vXd[1]}, 8192, v{vXd[1]}
""")
raw(f"s_mul_i32 s{sT2}, s{sSide}, 147456\ns_sub_u32 s{sT3}, 147456, s{sT2}\ns_mov_b32 s{sT0}, s{sC0}")
def chunk_regs(i):
    t = f"""
    s_mul_i32 s{sW[i]}, s{sT0}, 1179648
    s_lshl_b32 s{sT1}, s{sT0}, 7
    s_add_u32 s{sX0[i]}, s{sT1}, s{sT2}
    s_add_u32 s{sX1[i]}, s{sT1}, s{sT3}
    """
    if i < 8:
        t += f"""
    s_add_u32 s{sT0}, s{sT0}, 1
    s_cmp_eq_u32 s{sT0}, 9
    s_cselect_b32 s{sT0}, 0, s{sT0}
    """
    return t
for i in range(9): raw(chunk_regs(i))
raw(f"""
    s_lshl_b32 s{sT0}, s{sWv}, 14
    s_mov_b32 s{sM0[0]}, s{sT0}
    s_add_u32 s{sM0[1]}, s{sT0}, 4096
    s_add_u32 s{sM0[2]}, s{sT0}, 8192
    s_add_u32 s{sM0[3]}, s{sT0}, 12288
    s_waitcnt lgkmcnt(0)
    s_mov_b32 s{sSS}, s8
    s_mov_b32 s{sSS+1}, s9
    s_mov_b32 s{sSS+2}, 9216
    s_mov_b32 s{sSS+3}, 0x20000
    s_mov_b32 s{sZS}, s10
    s_mov_b32 s{sZS+1}, s11
    s_mov_b32 s{sZS+2}, 9216
    s_mov_b32 s{sZS+3}, 0x20000
    s_mov_b32 s{sWS}, s6
    s_mov_b32 s{sWS+1}, s7
    s_mov_b32 s{sWS+2}, 10616832
    s_mov_b32 s{sWS+3}, 0x20000
    s_mov_b32 s{sXS}, s4
    s_mov_b32 s{sXS+1}, s5
    s_mov_b32 s{sXS+2}, 2359296
    s_mov_b32 s{sXS+3}, 0x20000
""")
P += sz_loads("G0")
P += w_loads(0)
P += x_dma(0)
P += w_loads(1)
P += sz_loads("G1"); P += sz_loads("M")
P += x_dma(1)
P += w_loads(2)
raw(f"""
    s_mov_b32 s{sOS}, s12
    s_mov_b32 s{sOS+1}, s13
    s_mov_b32 s{sOS+2}, 18874368
    s_mov_b32 s{sOS+3}, 0x20000
    s_movk_i32 s{s202}, 0x202
    v_mov_b32 v{vC}, 0x01000100
    v_and_b32 v{TMP}, 31, v{vL}
    v_lshlrev_b32 v{TMP+1}, 7, v{TMP}
    v_lshl_add_u32 v{TMP+1}, v0, 14, v{TMP+1}
    v_bfe_u32 v{TMP+2}, v{vL}, 1, 3
    v_lshrrev_b32 v{TMP+3}, 5, v{vL}
    v_xor_b32 v{TMP+2}, v{TMP+2}, v{TMP+3}
    v_lshl_add_u32 v{vA[0]}, v{TMP+2}, 4, v{TMP+1}
    v_xor_b32 v{vA[1]}, 32, v{vA[0]}
    v_xor_b32 v{vA[2]}, 64, v{vA[0]}
    v_xor_b32 v{vA[3]}, 96, v{vA[0]}
    v_bfe_u32 v{TMP+1}, v{vL}, 1, 3
    v_and_b32 v{TMP+2}, 1, v{vL}
    v_lshl_or_b32 v{TMP+1}, v{TMP+2}, 3, v{TMP+1}
    v_and_b32 v{TMP+2}, 48, v{vL}
    v_or_b32 v{TMP+1}, v{TMP+1}, v{TMP+2}
    v_lshlrev_b32 v{TMP+1}, 4, v{TMP+1}
    v_add_u32 v{vBG}, {LDS_G0}, v{TMP+1}
    v_add_u32 v{vBG2}, {LDS_G0 + 65536}, v{TMP+1}
    v_and_b32 v{TMP+1}, 7, v{vL}
    v_bfe_u32 v{TMP+2}, v{vL}, 4, 1
    v_lshl_or_b32 v{TMP+1}, v{TMP+2}, 3, v{TMP+1}
    v_bfe_u32 v{TMP+2}, v{vL}, 3, 1
    v_lshl_or_b32 v{TMP+1}, v{TMP+2}, 4, v{TMP+1}
    v_and_b32 v{TMP+2}, 32, v{vL}
    v_or_b32 v{TMP+1}, v{TMP+1}, v{TMP+2}
    v_lshlrev_b32 v{TMP+1}, 4, v{TMP+1}
    v_lshl_add_u32 v{TMP+1}, v0, 11, v{TMP+1}
    v_add_u32 v{vWG}, {LDS_G0}, v{TMP+1}
    v_add_u32 v{vWG2}, {LDS_G0 + 65536}, v{TMP+1}
""")
P += tables("G0")
P += dequant(0)
P += w_loads(3)
raw(f"""
    v_bfe_u32 v{TMP+1}, v{vL}, 2, 3
    v_bfe_u32 v{TMP+2}, v{vL}, 1, 1
    v_xor_b32 v{TMP+1}, v{TMP+1}, v{TMP+2}
    v_lshl_or_b32 v{TMP+1}, v{TMP+2}, 4, v{TMP+1}
    v_and_b32 v{TMP+2}, 1, v{vL}
    v_lshl_or_b32 v{TMP+1}, v{TMP+2}, 3, v{TMP+1}
    v_and_b32 v{TMP+2}, 32, v{vL}
    v_or_b32 v{TMP+1}, v{TMP+1}, v{TMP+2}
    v_lshlrev_b32 v{vBM}, 4, v{TMP+1}
    v_and_b32 v{TMP+1}, 7, v{vL}
    v_bfe_u32 v{TMP+2}, v{vL}, 4, 1
    v_xor_b32 v{TMP+1}, v{TMP+1}, v{TMP+2}
    v_lshl_or_b32 v{TMP+1}, v{TMP+2}, 4, v{TMP+1}
    v_and_b32 v{TMP+2}, 32, v{vL}
    v_or_b32 v{TMP+1}, v{TMP+1}, v{TMP+2}
    v_lshlrev_b32 v{TMP+1}, 4, v{TMP+1}
    v_bfe_u32 v{TMP+2}, v{vL}, 3, 1
    v_lshl_add_u32 v{TMP+1}, v{TMP+2}, 10, v{TMP+1}
    v_lshl_add_u32 v{vWM}, v0, 11, v{TMP+1}
    s_lshl_b32 s{sT0}, s{sM_}, 8
    s_lshl_b32 s{sT1}, s{sWv}, 5
    s_add_u32 s{sT0}, s{sT0}, s{sT1}
    s_lshl_b32 s{sT1}, s{sSide}, 7
    s_add_u32 s{sT2}, s{sT0}, s{sT1}
    s_xor_b32 s{sT1}, s{sT1}, 128
    s_add_u32 s{sT3}, s{sT0}, s{sT1}
    s_mul_i32 s{sT2}, s{sT2}, 9216
    s_mul_i32 s{sT3}, s{sT3}, 9216
    v_lshrrev_b32 v{TMP+1}, 5, v{vL}
    v_mul_u32_u24 v{TMP+2}, 36864, v{TMP+1}
    v_and_b32 v{TMP+3}, 31, v{vL}
    v_lshl_add_u32 v{TMP+2}, v{TMP+3}, 2, v{TMP+2}
    s_lshl_b32 s{sT0}, s{sColG}, 1
    v_add_u32 v{TMP+2}, s{sT0}, v{TMP+2}
    v_add_u32 v{vO[0]}, s{sT2}, v{TMP+2}
    v_add_u32 v{vO[1]}, s{sT3}, v{TMP+2}
    v_mul_u32_u24 v{TMP+2}, 9216, v{TMP+3}
    v_lshl_add_u32 v{TMP+2}, v{TMP+1}, 4, v{TMP+2}
    s_lshl_b32 s{sT0}, s{sColM}, 1
    s_add_u32 s{sT0}, s{sT0}, s{sT2}
    v_add_u32 v{vOM}, s{sT0}, v{TMP+2}
""")
P += dequant(1)

def mid_soffsets():
    r = []
    for i in range(5):
        r += [salu(f"s_lshr_b32 s{sT0}, s{sWv}, 1"), salu(f"s_add_u32 s{sT0}, s{sT0}, {2*i}"),
              salu(f"s_add_u32 s{sT0}, s{sT0}, s{sC0}"), salu(f"s_cmp_ge_u32 s{sT0}, 9"),
              salu(f"s_cselect_b32 s{sT1}, 9, 0"), salu(f"s_sub_u32 s{sT0}, s{sT0}, s{sT1}"),
              salu(f"s_mul_i32 s{sMid[i]}, s{sT0}, 1179648")]
    return r
def row_offsets():
    return [salu(f"s_mov_b32 s{sRow[r]}, {(8*(r>>2) + (r&3))*9216}") for r in range(16)]

MF = []
frags = []
def add_frag(addr, off, region, pub):
    frags.append(dict(addr=addr, off=off, region=region, pub=pub, first=None, last=None)); return len(frags) - 1
def g_frag(q, s, u):
    if q < 9:
        return vBG, (q % 3) * 8192 + (2*s + u) * 1024, ("G0", q % 3)
    rr = q - 9
    o = LDS_G1 - LDS_G0 + rr * 8192 + (2*s + u) * 1024
    return (vBG, o, ("G1", rr)) if o < 65536 else (vBG2, o - 65536, ("G1", rr))
def add_mfma(g, acc, xa, n, first, swapped=False):
    MF.append(dict(g=g, acc=acc, xa=xa, n=n, first=first, swapped=swapped))
    f = frags[n]
    if f["first"] is None: f["first"] = len(MF) - 1
    f["last"] = len(MF) - 1
for g in range(9):
    for s in range(4):
        for u in range(2):
            n = add_frag(*g_frag(g, s, u), pub=max(g - 1, 0))
            for mt in range(2):
                add_mfma(g, (accA if mt == 0 else accB) + 16*u, xreg(g, mt, s), n, g == 0 and s == 0)
for r in range(9):
    for s in range(4):
        for u in range(2):
            n = add_frag(*g_frag(9 + r, s, u), pub=8 + r)
            add_mfma(9 + r, accC + 16*u, xreg(r, 1, s), n, r == 0 and s == 0)
for r in range(9):
    for s in range(4):
        for u in range(2):
            n = add_frag(*g_frag(9 + r, s, u), pub=8 + r)
            add_mfma(18 + r, accA + 16*u, xreg(r, 0, s), n, r == 0 and s == 0)
BETA_M = 25
for ks in range(36):
    n = add_frag(vBM, ks * 1024, ("M", ks >> 3), pub=BETA_M)
    add_mfma(27 + (ks >> 2), accB, xreg(ks >> 2, 0, ks & 3), n, ks == 0, swapped=True)
round_start = {}
for p, m in enumerate(MF):
    round_start.setdefault(m["g"], p)
anchor = {}
for n, f in enumerate(frags):
    la = O["la0"] if f["first"] < round_start[9] else O["la"]
    e = round_start[f["pub"]]
    if n >= NB: e = max(e, frags[n - NB]["last"] + 1)
    p = max(f["first"] - la, e)
    anchor.setdefault(p, []).append(n)
def b_read(n):
    f = frags[n]; b = BR + 4 * (n % NB)
    return I(f"ds_read_b128 v[{b}:{b+3}], v{f['addr']} offset:{f['off']}", "dsr", rd=[f"v{f['addr']}"], wr=vr(b, 4), ldsr=f["region"], shared=True)
def mfma(p):
    m = MF[p]; b = BR + 4 * (m["n"] % NB)
    acc = m["acc"]; xt, xr = m["xa"]
    c = "0" if m["first"] else f"v[{acc}:{acc+15}]"
    bt = f"v[{b}:{b+3}]"
    a_, b_ = (bt, xt) if m["swapped"] else (xt, bt)
    return I(f"v_mfma_f32_32x32x16_bf16 v[{acc}:{acc+15}], {a_}, {b_}, {c}", "mfma",
             rd=xr + vr(b, 4) + ([] if m["first"] else vr(acc, 16)), wr=vr(acc, 16), srcc=[] if m["first"] else vr(acc, 16))

load_round = {q: q - 4 for q in range(4, 18)}
load_round.update({18: 14, 19: 15, 20: 16, 21: 19, 22: 20})
deq_round = {q: q - 2 for q in range(2, 18)}
deq_round.update({18: 18, 19: 19, 20: 20, 21: 22, 22: 23})
E0 = epi_g(accA, 0, 0) + epi_g(accB, 1, 0)
E1 = epi_g(accC, 1, 128)
E2 = epi_g(accA, 0, 128)
extra = {0: tables("G1"), 1: tables("M"), 2: mid_soffsets() + row_offsets()}
pre = {}; fill = {}
for g in range(36):
    pr = []; fl = []
    if g <= 8: pr += a_reads(g)
    if g <= 16 or g == BETA_M:
        pr.append(I("s_barrier", "barrier"))
    loads = [q for q, r in load_round.items() if r == g]
    deqs = [q for q, r in deq_round.items() if r == g]
    late_loads = []
    for q in loads:
        if (q - NRAW) in deqs: late_loads += w_loads(q)
        else: fl += w_loads(q)
    if g == 13: fl += mid_addr()
    if g + 2 <= 8: fl += x_dma(g + 2)
    for q in deqs: fl += dequant(q)
    fl += late_loads
    fl += extra.get(g, [])
    if O["e0start"] <= g:
        k = (g - O["e0start"]) * O["e0rate"]
        if k < len(E0): fl += E0[k:k + O["e0rate"]]
    if 18 <= g <= 25: fl += E1[(g - 18) * 4:(g - 17) * 4]
    if 28 <= g <= 35: fl += E2[(g - 28) * 4:(g - 27) * 4]
    pre[g] = pr; fill[g] = fl
assert (17 - O["e0start"] + 1) * O["e0rate"] >= 32, "E0 mt0 must be finished before round 18"
assert (26 - O["e0start"] + 1) * O["e0rate"] >= 64

for g in range(36):
    p0 = round_start[g]; p1 = round_start.get(g + 1, len(MF))
    P += pre[g]
    n = p1 - p0; fl = fill[g]
    for k in range(n):
        p = p0 + k
        for fr in anchor.get(p, []): P.append(b_read(fr))
        P.append(mfma(p))
        P += fl[k * len(fl) // n:(k + 1) * len(fl) // n]
P += epi_mid(accB)

if O["ts"]:
    raw(f"""
    s_memrealtime s[4:5]
    s_load_dwordx2 s[6:7], s[0:1], 48
    s_waitcnt lgkmcnt(0)
    s_mov_b32 s8, s6
    s_mov_b32 s9, s7
    s_mov_b32 s10, 0x10000000
    s_mov_b32 s11, 0x20000
    v_mov_b32 v0, s14
    v_mov_b32 v1, s15
    v_mov_b32 v2, s4
    v_mov_b32 v3, s5
    s_lshl_b32 s12, s2, 2
    s_add_u32 s12, s12, s{sWv}
    s_lshl_b32 s12, s12, 5
    v_mov_b32 v4, s12
    v_mov_b32 v6, 0
    v_mov_b32 v7, 0
    v_mov_b32 v8, 0
    v_mov_b32 v9, 0
    """)
    P.append(I("buffer_store_dwordx4 v[0:3], v4, s[8:11], 0 offen", "vstore", rd=vr(0, 5)))
    P.append(I("buffer_store_dwordx4 v[6:9], v4, s[8:11], 0 offen offset:16", "vstore", rd=vr(4, 5)))
P.append(I("L_done:", "label"))
P.append(I("s_endpgm", "salu"))

P = insert_waits(P)
P = insert_hazard_nops(P)
a = Asm()
a(HEADER.rstrip())
a(f"; @launch grid=({O['grid']},1,1) block=(256,1,1) lds=163840")
a('.amdgcn_target "amdgcn-amd-amdhsa--gfx950"')
kernel_open(a, L)
a(render(P))
kernel_desc(a, L, 512, 102, 256, extra="  .amdhsa_float_denorm_mode_32 3")
open(out, "w").write(a.text())
print(stats(P), "total", len(P))
```
